```python
import torch

def _softmax(x, axis=-1):
    return torch.softmax(x, dim=axis)

def _gelu(x):
    return torch.nn.functional.gelu(x, approximate='tanh')

def _silu(x):
    return torch.nn.functional.silu(x)

def _sigmoid(x):
    return torch.sigmoid(x)

def _layernorm(x, axis=-1, eps=1e-05):
    m = x.mean(dim=axis, keepdim=True)
    v = x.var(dim=axis, keepdim=True, unbiased=False)
    return (x - m) / torch.sqrt(v + eps)

def _scatter_add(tgt, idx, src, axis=0):
    return tgt.clone().index_add_(axis, idx, src)

def _segment_sum(src, seg, n):
    out = torch.zeros((n,) + src.shape[1:], dtype=src.dtype)
    return out.index_add_(0, seg, src)

def _pad(x, pw):
    flat = tuple((v for pair in reversed(pw) for v in pair))
    return torch.nn.functional.pad(x, flat)
kernel_name = 'standalone__autoregressive_conv_wavenet__speech'

def setup_inputs():

    _w = lambda a: (lambda t: t.to(torch.bfloat16) if t.is_floating_point() else t)(torch.as_tensor(a))
    B, T, D, K = (2, 4000, 256, 3)
    return {'x': _w((lambda *s: torch.randn(*s, dtype=torch.bfloat16) * 0.1)(B, T, D)), 'w': _w((lambda *s: torch.randn(*s, dtype=torch.bfloat16) * 0.1)(K, D, 2 * D)), 'w_o': _w((lambda *s: torch.randn(*s, dtype=torch.bfloat16) * 0.05)(D, D))}

def reference(x, w, w_o):
    B, T, D = x.shape
    K = w.shape[0]
    dil = 2
    pad = (K - 1) * dil
    xp = _pad(x, ((0, 0), (pad, 0), (0, 0)))
    h = torch.einsum('btc,cd->btd', xp[:, pad:pad + T, :], w[0])
    for i in range(1, K):
        off = pad - i * dil
        h = h + torch.einsum('btc,cd->btd', xp[:, off:off + T, :], w[i])
    f = h[..., :D].clone()
    g = h[..., D:].clone()
    z = torch.tanh(f) * _sigmoid(g)
    return z @ w_o
```

```python
import sys
L = []
def e(s=""): L.append(s)

HDR = open("standalone__autoregressive_conv_wavenet__speech.s.ref").read().split("\n")
for line in HDR:
    if "@launch" in line: break
    if line.startswith(";") : e(line)
e("; @launch kernel=wn_conv_kernel grid=(256,1,1) block=(256,1,1) lds=121088")
e("; @launch kernel=wn_out_kernel grid=(256,1,1) block=(256,1,1) lds=99584")
e('.amdgcn_target "amdgcn-amd-amdhsa--gfx950"')
e(".text")

XROW = 528
WBASE = 71936
def k1():
    e(".globl wn_conv_kernel")
    e(".p2align 8")
    e(".type wn_conv_kernel,@function")
    e("wn_conv_kernel:")
    e("s_cmp_ge_u32 s2, 256")
    e("s_cbranch_scc1 L1_end")
    e("s_load_dwordx4 s[4:7], s[0:1], 0      ; x, w")
    e("s_load_dwordx2 s[8:9], s[0:1], 40     ; ws")
    e("s_and_b32 s24, s2, 7")
    e("s_lshr_b32 s25, s2, 3")
    e("s_lshr_b32 s26, s25, 2")
    e("s_lshl_b32 s27, s24, 3")
    e("s_add_u32 s26, s26, s27              ; rtg")
    e("s_and_b32 s27, s25, 3                ; ct")
    e("s_lshr_b32 s28, s26, 5               ; b")
    e("s_and_b32 s29, s26, 31               ; rt")
    e("s_mul_i32 s30, s28, 2048000")
    e("v_lshrrev_b32 v1, 6, v0")
    e("v_and_b32 v2, 63, v0                 ; lane")
    e("s_nop 0")
    e("v_readfirstlane_b32 s31, v1          ; wave")
    e("s_waitcnt lgkmcnt(0)")
    e("s_add_u32 s12, s4, s30")
    e("s_addc_u32 s13, s5, 0")
    e("s_mov_b32 s14, 2048000")
    e("s_mov_b32 s15, 0x00020000")
    e("s_mov_b32 s16, s6")
    e("s_mov_b32 s17, s7")
    e("s_mov_b32 s18, 786432")
    e("s_mov_b32 s19, 0x00020000")
    e("s_add_u32 s20, s8, s30")
    e("s_addc_u32 s21, s9, 0")
    e("s_mov_b32 s22, 2048000")
    e("s_mov_b32 s23, 0x00020000")
    e("s_lshr_b32 s32, s31, 1               ; wm")
    e("s_and_b32 s33, s31, 1                ; wn")
    e("s_lshl_b32 s34, s29, 16              ; rt*128*512")
    e("s_sub_u32 s34, s34, 2048")
    e("v_lshlrev_b32 v3, 4, v0")
    e("v_add_u32 v3, s34, v3")
    XST = 56
    for it in range(17):
        e(f"buffer_load_dwordx4 v[{XST+4*it}:{XST+4*it+3}], v3, s[12:15], 0 offen")
        if it < 16: e("v_add_u32 v3, 0x1000, v3")
    e("v_and_b32 v4, 15, v0")
    e("v_lshrrev_b32 v5, 4, v0")
    e("v_and_b32 v6, 3, v5")
    e("v_lshlrev_b32 v6, 2, v6")
    e("v_xor_b32 v4, v4, v6                 ; g")
    e("v_and_b32 v6, 7, v4")
    e("v_lshlrev_b32 v6, 4, v6")
    e("v_lshrrev_b32 v7, 3, v4")
    e("v_lshlrev_b32 v7, 9, v7")
    e("v_add_u32 v6, v6, v7")
    e("v_lshlrev_b32 v5, 10, v5")
    e("v_add_u32 v6, v6, v5")
    e("s_lshl_b32 s35, s27, 7")
    e("v_add_u32 v4, s35, v6")
    e(f"v_lshlrev_b32 v5, 4, v0")
    e(f"v_add_u32 v5, {WBASE}, v5")
    WST = [124, 140, 40]
    def wloads(c):
        st = WST[c % 3]
        for u in range(4):
            e(f"s_mov_b32 s36, {c*65536 + u*16384}")
            e(f"buffer_load_dwordx4 v[{st+4*u}:{st+4*u+3}], v4, s[16:19], s36 offen")
    wloads(0); wloads(1); wloads(2)
    e("v_lshrrev_b32 v6, 5, v0")
    e(f"v_mul_u32_u24 v6, {XROW}, v6")
    e("v_and_b32 v7, 31, v0")
    e("v_lshlrev_b32 v7, 4, v7")
    e("v_add_u32 v6, v6, v7")
    e(f"v_add_u32 v7, {16*8*XROW}, v6")
    e("v_and_b32 v8, 31, v2")
    e("s_lshl_b32 s36, s32, 6")
    e("v_add_u32 v8, s36, v8")
    e(f"v_mul_u32_u24 v8, {XROW}, v8")
    e("v_lshrrev_b32 v9, 5, v2              ; hi")
    e("v_lshlrev_b32 v10, 4, v9")
    e("v_add_u32 v8, v8, v10")
    e("v_and_b32 v10, 15, v2")
    e("v_lshrrev_b32 v10, 2, v10            ; r")
    e("v_and_b32 v11, 3, v2                 ; c4")
    e("v_lshrrev_b32 v12, 4, v2")
    e("v_and_b32 v12, 1, v12                ; q1")
    e("v_lshlrev_b32 v13, 1, v12            ; q1*2")
    e("v_lshrrev_b32 v14, 1, v11            ; c4>>1")
    e("v_add_u32 v13, v13, v14")
    e("s_lshl_b32 s36, s33, 2")
    e("v_add_u32 v13, s36, v13              ; g = wn*4 + q1*2 + (c4>>1)")
    e("v_lshlrev_b32 v14, 2, v10")
    e("v_xor_b32 v13, v13, v14              ; g ^ (r<<2)")
    e("v_lshlrev_b32 v13, 4, v13")
    e("v_and_b32 v14, 1, v11")
    e("v_lshlrev_b32 v14, 3, v14")
    e("v_add_u32 v13, v13, v14              ; + half*8")
    e("v_lshlrev_b32 v14, 3, v9")
    e("v_add_u32 v14, v14, v10              ; hi*8 + r")
    e("v_lshlrev_b32 v14, 8, v14")
    e("v_add_u32 v13, v13, v14")
    e(f"v_add_u32 v10, {WBASE}, v13")
    e("v_xor_b32 v11, 0x80, v10")
    for i in range(64): e(f"v_mov_b32 v{192+i}, 0")
    e("s_waitcnt vmcnt(12)")
    for it in range(17):
        if it < 16: e(f"ds_write_b128 v6, v[{XST+4*it}:{XST+4*it+3}] offset:{it*8*XROW}")
        else: e(f"ds_write_b128 v7, v[{XST+4*it}:{XST+4*it+3}]")
    def wwrites(c):
        st = WST[c % 3]
        for u in range(4):
            e(f"ds_write_b128 v5, v[{st+4*u}:{st+4*u+3}] offset:{(c%3)*16384+u*4096}")
    e("s_waitcnt vmcnt(8)")
    wwrites(0)
    e("s_waitcnt vmcnt(4)")
    wwrites(1)
    e("s_waitcnt lgkmcnt(0)")
    e("s_barrier")
    FR = [160, 176]
    def reads(ks):
        c, kk = ks >> 2, ks & 3
        j, s = ks >> 4, ks & 15
        fb = FR[ks % 2]
        for mt in range(2):
            off = (mt*32 + 4 - 2*j)*XROW + s*32
            e(f"ds_read_b128 v[{fb+4*mt}:{fb+4*mt+3}], v8 offset:{off}")
        wo = (c % 3)*16384 + kk*4096
        for fg in range(2):
            a = 10 + fg
            e(f"ds_read_b64_tr_b16 v[{fb+8+4*fg}:{fb+8+4*fg+1}], v{a} offset:{wo}")
            e(f"ds_read_b64_tr_b16 v[{fb+8+4*fg+2}:{fb+8+4*fg+3}], v{a} offset:{wo+1024}")
    def mfmas(ks):
        fb = FR[ks % 2]
        for mt in range(2):
            for fg in range(2):
                acc = 192 + (mt*2+fg)*16
                e(f"v_mfma_f32_32x32x16_bf16 v[{acc}:{acc+15}], v[{fb+8+4*fg}:{fb+8+4*fg+3}], v[{fb+4*mt}:{fb+4*mt+3}], v[{acc}:{acc+15}]")
    reads(0)
    for c in range(12):
        nw = 0
        if c + 2 <= 11:
            e("s_waitcnt vmcnt(0)")
            wwrites(c + 2); nw = 4
        if c + 3 <= 11:
            wloads(c + 3)
        for kk in range(4):
            ks = 4*c + kk
            if ks + 1 < 48:
                reads(ks + 1)
                cnt = 6 + (nw if kk == 0 else 0)
            else:
                cnt = 0
            e(f"s_waitcnt lgkmcnt({cnt})")
            mfmas(ks)
        if c < 11:
            e("s_barrier")
    e("s_nop 15")
    e("s_nop 7")
    e("v_and_b32 v12, 31, v2")
    e("s_lshl_b32 s36, s29, 7")
    e("s_lshl_b32 s37, s32, 6")
    e("s_add_u32 s36, s36, s37")
    e("v_add_u32 v12, s36, v12")
    e("v_lshlrev_b32 v12, 9, v12")
    e("s_lshl_b32 s36, s27, 7")
    e("s_lshl_b32 s37, s33, 6")
    e("s_add_u32 s36, s36, s37")
    e("v_lshlrev_b32 v13, 3, v9")
    e("v_add_u32 v13, s36, v13")
    e("v_add_u32 v12, v12, v13")
    e("v_add_u32 v13, 0x4000, v12           ; mt=1")
    e("s_mov_b32 s40, 0x4038aa3b            ; 2*log2(e)")
    e("s_mov_b32 s41, 0xbfb8aa3b            ; -log2(e)")
    e("s_mov_b32 s42, 0x41f00000            ; 30.0")
    e("s_mov_b32 s43, 0x42700000            ; 60.0")
    T0 = 64
    for mt in range(2):
        for i in range(16):
            f = 192 + (mt*2)*16 + i
            g = 192 + (mt*2+1)*16 + i
            a, b, d = T0 + 0, T0 + 1, T0 + 2
            e(f"v_mul_f32 v{a}, s40, v{f}")
            e(f"v_mul_f32 v{b}, s41, v{g}")
            e(f"v_min_f32 v{a}, s42, v{a}")
            e(f"v_min_f32 v{b}, s43, v{b}")
            e(f"v_exp_f32 v{a}, v{a}")
            e(f"v_exp_f32 v{b}, v{b}")
            e("s_nop 0")
            e(f"v_add_f32 v{d}, 1.0, v{a}")
            e(f"v_add_f32 v{b}, 1.0, v{b}")
            e(f"v_mul_f32 v{b}, v{d}, v{b}")
            e(f"v_rcp_f32 v{b}, v{b}")
            e(f"v_add_f32 v{a}, -1.0, v{a}")
            e(f"v_mul_f32 v{f}, v{a}, v{b}")
        for q in range(4):
            f = 192 + (mt*2)*16 + 4*q
            p = 72 + 2*q
            e(f"v_cvt_pk_bf16_f32 v{p}, v{f}, v{f+1}")
            e(f"v_cvt_pk_bf16_f32 v{p+1}, v{f+2}, v{f+3}")
        for q in range(4):
            p = 72 + 2*q
            e(f"buffer_store_dwordx2 v[{p}:{p+1}], v{12+mt}, s[20:23], 0 offen offset:{16*q}")
        e("s_nop 1")
    e("s_waitcnt vmcnt(0)")
    e("L1_end:")
    e("s_endpgm")

WBASE2 = 34048
def k2():
    e(".globl wn_out_kernel")
    e(".p2align 8")
    e(".type wn_out_kernel,@function")
    e("wn_out_kernel:")
    e("s_cmp_ge_u32 s2, 256")
    e("s_cbranch_scc1 L2_end")
    e("s_and_b32 s24, s2, 7")
    e("s_lshr_b32 s25, s2, 4")
    e("s_lshl_b32 s25, s25, 3")
    e("s_add_u32 s24, s24, s25")
    e("s_cmp_ge_u32 s24, 125")
    e("s_cbranch_scc1 L2_end")
    e("s_lshr_b32 s27, s2, 3")
    e("s_and_b32 s27, s27, 1                ; ct")
    e("s_load_dwordx2 s[4:5], s[0:1], 16    ; w_o")
    e("s_load_dwordx4 s[8:11], s[0:1], 24")
    e("s_load_dwordx2 s[6:7], s[0:1], 40    ; ws")
    e("v_lshrrev_b32 v1, 6, v0")
    e("v_and_b32 v2, 63, v0")
    e("s_nop 0")
    e("v_readfirstlane_b32 s31, v1")
    e("s_waitcnt lgkmcnt(0)")
    e("s_mov_b32 s12, s6")
    e("s_mov_b32 s13, s7")
    e("s_mov_b32 s14, 4096000")
    e("s_mov_b32 s15, 0x00020000")
    e("s_mov_b32 s16, s4")
    e("s_mov_b32 s17, s5")
    e("s_mov_b32 s18, 131072")
    e("s_mov_b32 s19, 0x00020000")
    e("s_mov_b32 s20, s8")
    e("s_mov_b32 s21, s9")
    e("s_mov_b32 s22, 4096000")
    e("s_mov_b32 s23, 0x00020000")
    e("s_lshr_b32 s32, s31, 1               ; wm")
    e("s_and_b32 s33, s31, 1                ; wn")
    e("s_lshl_b32 s34, s24, 15")
    e("v_lshlrev_b32 v3, 4, v0")
    e("v_add_u32 v3, s34, v3")
    ZST = 64
    for it in range(8):
        e(f"s_mov_b32 s36, {it*4096}")
        e(f"buffer_load_dwordx4 v[{ZST+4*it}:{ZST+4*it+3}], v3, s[12:15], s36 offen")
    e("v_and_b32 v4, 15, v0")
    e("v_lshrrev_b32 v5, 4, v0")
    e("v_and_b32 v6, 3, v5")
    e("v_lshlrev_b32 v6, 2, v6")
    e("v_xor_b32 v4, v4, v6                 ; g")
    e("v_lshlrev_b32 v4, 4, v4")
    e("v_lshlrev_b32 v5, 9, v5")
    e("v_add_u32 v4, v4, v5")
    e("s_lshl_b32 s35, s27, 8")
    e("v_add_u32 v4, s35, v4                ; v4 = w_o voffset")
    e(f"v_lshlrev_b32 v5, 4, v0")
    e(f"v_add_u32 v5, {WBASE2}, v5")
    WST = 96
    for u in range(16):
        e(f"s_mov_b32 s36, {u*8192}")
        e(f"buffer_load_dwordx4 v[{WST+4*u}:{WST+4*u+3}], v4, s[16:19], s36 offen")
    e("v_lshrrev_b32 v6, 5, v0")
    e(f"v_mul_u32_u24 v6, {XROW}, v6")
    e("v_and_b32 v7, 31, v0")
    e("v_lshlrev_b32 v7, 4, v7")
    e("v_add_u32 v6, v6, v7")
    e("v_and_b32 v8, 31, v2")
    e("s_lshl_b32 s36, s32, 5")
    e("v_add_u32 v8, s36, v8")
    e(f"v_mul_u32_u24 v8, {XROW}, v8")
    e("v_lshrrev_b32 v9, 5, v2              ; hi")
    e("v_lshlrev_b32 v10, 4, v9")
    e("v_add_u32 v8, v8, v10")
    e("v_and_b32 v10, 15, v2")
    e("v_lshrrev_b32 v10, 2, v10            ; r")
    e("v_and_b32 v11, 3, v2                 ; c4")
    e("v_lshrrev_b32 v12, 4, v2")
    e("v_and_b32 v12, 1, v12                ; q1")
    e("v_lshlrev_b32 v13, 1, v12")
    e("v_lshrrev_b32 v14, 1, v11")
    e("v_add_u32 v13, v13, v14")
    e("s_lshl_b32 s36, s33, 3")
    e("v_add_u32 v13, s36, v13              ; g = wn*8 + q1*2 + (c4>>1)")
    e("v_lshlrev_b32 v14, 2, v10")
    e("v_xor_b32 v13, v13, v14")
    e("v_lshlrev_b32 v13, 4, v13")
    e("v_and_b32 v14, 1, v11")
    e("v_lshlrev_b32 v14, 3, v14")
    e("v_add_u32 v13, v13, v14")
    e("v_lshlrev_b32 v14, 3, v9")
    e("v_add_u32 v14, v14, v10")
    e("v_lshlrev_b32 v14, 8, v14")
    e("v_add_u32 v13, v13, v14")
    e(f"v_add_u32 v10, {WBASE2}, v13        ; nt=0")
    e("v_xor_b32 v11, 64, v10               ; nt=1")
    for i in range(32): e(f"v_mov_b32 v{192+i}, 0")
    e("s_waitcnt vmcnt(16)")
    for it in range(8):
        e(f"ds_write_b128 v6, v[{ZST+4*it}:{ZST+4*it+3}] offset:{it*8*XROW}")
    for u in range(16):
        e(f"s_waitcnt vmcnt({15-u})")
        e(f"ds_write_b128 v5, v[{WST+4*u}:{WST+4*u+3}] offset:{u*4096}")
    e("s_waitcnt lgkmcnt(0)")
    e("s_barrier")
    FR = [160, 172]
    def reads(ks):
        fb = FR[ks % 2]
        e(f"ds_read_b128 v[{fb}:{fb+3}], v8 offset:{ks*32}")
        for nt in range(2):
            e(f"ds_read_b64_tr_b16 v[{fb+4+4*nt}:{fb+4+4*nt+1}], v{10+nt} offset:{ks*4096}")
            e(f"ds_read_b64_tr_b16 v[{fb+4+4*nt+2}:{fb+4+4*nt+3}], v{10+nt} offset:{ks*4096+1024}")
    reads(0)
    for ks in range(16):
        if ks + 1 < 16:
            reads(ks + 1); cnt = 5
        else: cnt = 0
        e(f"s_waitcnt lgkmcnt({cnt})")
        fb = FR[ks % 2]
        for nt in range(2):
            acc = 192 + nt*16
            e(f"v_mfma_f32_32x32x16_bf16 v[{acc}:{acc+15}], v[{fb+4+4*nt}:{fb+4+4*nt+3}], v[{fb}:{fb+3}], v[{acc}:{acc+15}]")
    e("s_nop 15")
    e("s_nop 7")
    e("v_and_b32 v12, 31, v2")
    e("s_lshl_b32 s36, s24, 6")
    e("s_lshl_b32 s37, s32, 5")
    e("s_add_u32 s36, s36, s37")
    e("v_add_u32 v12, s36, v12")
    e("v_lshlrev_b32 v12, 9, v12")
    e("s_lshl_b32 s36, s27, 8")
    e("s_lshl_b32 s37, s33, 7")
    e("s_add_u32 s36, s36, s37")
    e("v_lshlrev_b32 v13, 3, v9")
    e("v_add_u32 v13, s36, v13")
    e("v_add_u32 v12, v12, v13")
    for nt in range(2):
        for q in range(4):
            f = 192 + nt*16 + 4*q
            p = 64 + nt*8 + 2*q
            e(f"v_cvt_pk_bf16_f32 v{p}, v{f}, v{f+1}")
            e(f"v_cvt_pk_bf16_f32 v{p+1}, v{f+2}, v{f+3}")
    for nt in range(2):
        for q in range(4):
            p = 64 + nt*8 + 2*q
            e(f"buffer_store_dwordx2 v[{p}:{p+1}], v12, s[20:23], 0 offen offset:{nt*64+16*q}")
    e("s_waitcnt vmcnt(0)")
    e("L2_end:")
    e("s_endpgm")

k1()
k2()
e('.section .rodata,"a"')
for name in ("wn_conv_kernel", "wn_out_kernel"):
    e(".p2align 6")
    e(f".amdhsa_kernel {name}")
    e("  .amdhsa_next_free_vgpr 256")
    e("  .amdhsa_next_free_sgpr 64")
    e("  .amdhsa_accum_offset 256")
    e("  .amdhsa_group_segment_fixed_size 0")
    e("  .amdhsa_kernarg_size 48")
    e("  .amdhsa_user_sgpr_count 2")
    e("  .amdhsa_user_sgpr_kernarg_segment_ptr 1")
    e("  .amdhsa_system_sgpr_workgroup_id_x 1")
    e(".end_amdhsa_kernel")
out = sys.argv[1] if len(sys.argv) > 1 else "standalone__autoregressive_conv_wavenet__speech.s"
open(out, "w").write("\n".join(L) + "\n")
```

```python
import sys
L = []
import os
STAMP = bool(os.environ.get("STAMP"))
def e(s=""): L.append(s)
_nst = [0]
def stamp():
    if not STAMP: return
    i = _nst[0]; _nst[0] += 1
    e(f"s_memtime s[{44+2*i}:{45+2*i}]")
    e("s_waitcnt lgkmcnt(0)")
def stamp_store(base_sgpr_lo, kid):
    if not STAMP: return
    e("s_cmp_lg_u32 s31, 0")
    e(f"s_cbranch_scc1 Lst_skip{kid}")
    e(f"s_add_u32 s60, s{base_sgpr_lo}, {(32<<20) + kid*65536}")
    e(f"s_addc_u32 s61, s{base_sgpr_lo+1}, 0")
    e("s_mov_b32 s62, 65536")
    e("s_mov_b32 s63, 0x00020000")
    e("s_lshl_b32 s59, s2, 6")
    e("v_mov_b32 v20, s59")
    for i in range(_nst[0]):
        e(f"v_mov_b32 v21, s{44+2*i}")
        e(f"buffer_store_dword v21, v20, s[60:63], 0 offen offset:{4*i}")
    e("s_waitcnt vmcnt(0)")
    e(f"Lst_skip{kid}:")
    _nst[0] = 0


HDR = open("standalone__autoregressive_conv_wavenet__speech.s.ref").read().split("\n")
for line in HDR:
    if "@launch" in line: break
    if line.startswith(";") : e(line)
e("; @launch kernel=wn_conv_kernel grid=(256,1,1) block=(256,1,1) lds=121088")
e("; @launch kernel=wn_out_kernel grid=(256,1,1) block=(256,1,1) lds=99584")
e('.amdgcn_target "amdgcn-amd-amdhsa--gfx950"')
e(".text")

XROW = 528
WBASE = 71936
def k1():
    e(".globl wn_conv_kernel")
    e(".p2align 8")
    e(".type wn_conv_kernel,@function")
    e("wn_conv_kernel:")
    e("s_cmp_ge_u32 s2, 256")
    e("s_cbranch_scc1 L1_end")
    e("s_load_dwordx4 s[4:7], s[0:1], 0      ; x, w")
    e("s_load_dwordx2 s[8:9], s[0:1], 40     ; ws")
    e("s_and_b32 s24, s2, 7")
    e("s_lshr_b32 s25, s2, 3")
    e("s_lshr_b32 s26, s25, 2")
    e("s_lshl_b32 s27, s24, 3")
    e("s_add_u32 s26, s26, s27              ; rtg")
    e("s_and_b32 s27, s25, 3                ; ct")
    e("s_lshr_b32 s28, s26, 5               ; b")
    e("s_and_b32 s29, s26, 31               ; rt")
    e("s_mul_i32 s30, s28, 2048000")
    e("v_lshrrev_b32 v1, 6, v0")
    e("v_and_b32 v2, 63, v0                 ; lane")
    e("s_nop 0")
    e("v_readfirstlane_b32 s31, v1          ; wave")
    stamp()
    e("s_waitcnt lgkmcnt(0)")
    e("s_add_u32 s12, s4, s30")
    e("s_addc_u32 s13, s5, 0")
    e("s_mov_b32 s14, 2048000")
    e("s_mov_b32 s15, 0x00020000")
    e("s_mov_b32 s16, s6")
    e("s_mov_b32 s17, s7")
    e("s_mov_b32 s18, 786432")
    e("s_mov_b32 s19, 0x00020000")
    e("s_add_u32 s20, s8, s30")
    e("s_addc_u32 s21, s9, 0")
    e("s_mov_b32 s22, 2048000")
    e("s_mov_b32 s23, 0x00020000")
    e("s_lshr_b32 s32, s31, 1               ; wm")
    e("s_and_b32 s33, s31, 1                ; wn")
    e("s_lshl_b32 s34, s29, 16              ; rt*128*512")
    e("s_sub_u32 s34, s34, 2048")
    e("v_lshlrev_b32 v3, 4, v0")
    e("v_add_u32 v3, s34, v3")
    XST = 56
    for it in range(17):
        e(f"buffer_load_dwordx4 v[{XST+4*it}:{XST+4*it+3}], v3, s[12:15], 0 offen")
        if it < 16: e("v_add_u32 v3, 0x1000, v3")
    e("v_and_b32 v4, 15, v0")
    e("v_lshrrev_b32 v5, 4, v0")
    e("v_and_b32 v6, 3, v5")
    e("v_lshlrev_b32 v6, 2, v6")
    e("v_xor_b32 v4, v4, v6                 ; g")
    e("v_and_b32 v6, 7, v4")
    e("v_lshlrev_b32 v6, 4, v6")
    e("v_lshrrev_b32 v7, 3, v4")
    e("v_lshlrev_b32 v7, 9, v7")
    e("v_add_u32 v6, v6, v7")
    e("v_lshlrev_b32 v5, 10, v5")
    e("v_add_u32 v6, v6, v5")
    e("s_lshl_b32 s35, s27, 7")
    e("v_add_u32 v4, s35, v6")
    e(f"v_lshlrev_b32 v5, 4, v0")
    e(f"v_add_u32 v5, {WBASE}, v5")
    WST = [124, 140, 40, 24]
    def wloads(c):
        st = WST[c % 4]
        for u in range(4):
            e(f"s_mov_b32 s36, {c*65536 + u*16384}")
            e(f"buffer_load_dwordx4 v[{st+4*u}:{st+4*u+3}], v4, s[16:19], s36 offen")
    wloads(0); wloads(1); wloads(2); wloads(3)
    e("v_lshrrev_b32 v6, 5, v0")
    e(f"v_mul_u32_u24 v6, {XROW}, v6")
    e("v_and_b32 v7, 31, v0")
    e("v_lshlrev_b32 v7, 4, v7")
    e("v_add_u32 v6, v6, v7")
    e(f"v_add_u32 v7, {16*8*XROW}, v6")
    e("v_and_b32 v8, 31, v2")
    e("s_lshl_b32 s36, s32, 6")
    e("v_add_u32 v8, s36, v8")
    e(f"v_mul_u32_u24 v8, {XROW}, v8")
    e("v_lshrrev_b32 v9, 5, v2              ; hi")
    e("v_lshlrev_b32 v10, 4, v9")
    e("v_add_u32 v8, v8, v10")
    e("v_and_b32 v10, 15, v2")
    e("v_lshrrev_b32 v10, 2, v10            ; r")
    e("v_and_b32 v11, 3, v2                 ; c4")
    e("v_lshrrev_b32 v12, 4, v2")
    e("v_and_b32 v12, 1, v12                ; q1")
    e("v_lshlrev_b32 v13, 1, v12            ; q1*2")
    e("v_lshrrev_b32 v14, 1, v11            ; c4>>1")
    e("v_add_u32 v13, v13, v14")
    e("s_lshl_b32 s36, s33, 2")
    e("v_add_u32 v13, s36, v13              ; g = wn*4 + q1*2 + (c4>>1)")
    e("v_lshlrev_b32 v14, 2, v10")
    e("v_xor_b32 v13, v13, v14              ; g ^ (r<<2)")
    e("v_lshlrev_b32 v13, 4, v13")
    e("v_and_b32 v14, 1, v11")
    e("v_lshlrev_b32 v14, 3, v14")
    e("v_add_u32 v13, v13, v14              ; + half*8")
    e("v_lshlrev_b32 v14, 3, v9")
    e("v_add_u32 v14, v14, v10              ; hi*8 + r")
    e("v_lshlrev_b32 v14, 8, v14")
    e("v_add_u32 v13, v13, v14")
    e(f"v_add_u32 v10, {WBASE}, v13")
    e("v_xor_b32 v11, 0x80, v10")
    for i in range(64): e(f"v_mov_b32 v{192+i}, 0")
    stamp()
    e("s_waitcnt vmcnt(16)")
    for it in range(17):
        if it < 16: e(f"ds_write_b128 v6, v[{XST+4*it}:{XST+4*it+3}] offset:{it*8*XROW}")
        else: e(f"ds_write_b128 v7, v[{XST+4*it}:{XST+4*it+3}]")
    def wwrites(c):
        st = WST[c % 4]
        for u in range(4):
            e(f"ds_write_b128 v5, v[{st+4*u}:{st+4*u+3}] offset:{(c%3)*16384+u*4096}")
    e("s_waitcnt vmcnt(12)")
    wwrites(0)
    e("s_waitcnt vmcnt(8)")
    wwrites(1)
    e("s_waitcnt lgkmcnt(0)")
    e("s_barrier")
    FR = [160, 176]
    def reads(ks):
        if os.environ.get("NOREAD"): return
        c, kk = ks >> 2, ks & 3
        j, s = ks >> 4, ks & 15
        fb = FR[ks % 2]
        for mt in range(2):
            off = (mt*32 + 4 - 2*j)*XROW + s*32
            e(f"ds_read_b128 v[{fb+4*mt}:{fb+4*mt+3}], v8 offset:{off}")
        wo = (c % 3)*16384 + kk*4096
        for fg in range(2):
            a = 10 + fg
            e(f"ds_read_b64_tr_b16 v[{fb+8+4*fg}:{fb+8+4*fg+1}], v{a} offset:{wo}")
            e(f"ds_read_b64_tr_b16 v[{fb+8+4*fg+2}:{fb+8+4*fg+3}], v{a} offset:{wo+1024}")
    def mfmas(ks):
        if os.environ.get("NOMFMA"): return
        fb = FR[ks % 2]
        for mt in range(2):
            for fg in range(2):
                acc = 192 + (mt*2+fg)*16
                e(f"v_mfma_f32_32x32x16_bf16 v[{acc}:{acc+15}], v[{fb+8+4*fg}:{fb+8+4*fg+3}], v[{fb+4*mt}:{fb+4*mt+3}], v[{acc}:{acc+15}]")
    stamp()
    reads(0)
    for c in range(12):
        nw = 0
        if c + 2 <= 11:
            e("s_waitcnt vmcnt(4)" if c + 3 <= 11 else "s_waitcnt vmcnt(0)")
            if not os.environ.get("NOWR"): wwrites(c + 2); nw = 4
        if c + 4 <= 11 and not os.environ.get("NOLD"):
            wloads(c + 4)
        for kk in range(4):
            ks = 4*c + kk
            if ks + 1 < 48:
                reads(ks + 1)
                cnt = 6 + (nw if kk == 0 else 0)
            else:
                cnt = 0
            e(f"s_waitcnt lgkmcnt({cnt})")
            mfmas(ks)
        if c < 11 and not os.environ.get("NOBAR"):
            e("s_barrier")
    stamp()
    e("s_nop 15")
    e("s_nop 7")
    e("v_and_b32 v12, 31, v2")
    e("s_lshl_b32 s36, s29, 7")
    e("s_lshl_b32 s37, s32, 6")
    e("s_add_u32 s36, s36, s37")
    e("v_add_u32 v12, s36, v12")
    e("v_lshlrev_b32 v12, 9, v12")
    e("s_lshl_b32 s36, s27, 7")
    e("s_lshl_b32 s37, s33, 6")
    e("s_add_u32 s36, s36, s37")
    e("v_lshlrev_b32 v13, 3, v9")
    e("v_add_u32 v13, s36, v13")
    e("v_add_u32 v12, v12, v13")
    e("v_add_u32 v13, 0x4000, v12           ; mt=1")
    e("s_mov_b32 s40, 0x4038aa3b            ; 2*log2(e)")
    e("s_mov_b32 s41, 0xbfb8aa3b            ; -log2(e)")
    e("s_mov_b32 s42, 0x41f00000            ; 30.0")
    e("s_mov_b32 s43, 0x42700000            ; 60.0")
    T0 = 64
    for mt in range(2):
        for i in range(16):
            f = 192 + (mt*2)*16 + i
            g = 192 + (mt*2+1)*16 + i
            a, b, d = T0 + 0, T0 + 1, T0 + 2
            e(f"v_mul_f32 v{a}, s40, v{f}")
            e(f"v_mul_f32 v{b}, s41, v{g}")
            e(f"v_min_f32 v{a}, s42, v{a}")
            e(f"v_min_f32 v{b}, s43, v{b}")
            e(f"v_exp_f32 v{a}, v{a}")
            e(f"v_exp_f32 v{b}, v{b}")
            e("s_nop 0")
            e(f"v_add_f32 v{d}, 1.0, v{a}")
            e(f"v_add_f32 v{b}, 1.0, v{b}")
            e(f"v_mul_f32 v{b}, v{d}, v{b}")
            e(f"v_rcp_f32 v{b}, v{b}")
            e(f"v_add_f32 v{a}, -1.0, v{a}")
            e(f"v_mul_f32 v{f}, v{a}, v{b}")
        for q in range(4):
            f = 192 + (mt*2)*16 + 4*q
            p = 72 + 2*q
            e(f"v_cvt_pk_bf16_f32 v{p}, v{f}, v{f+1}")
            e(f"v_cvt_pk_bf16_f32 v{p+1}, v{f+2}, v{f+3}")
        for q in range(4):
            p = 72 + 2*q
            e(f"buffer_store_dwordx2 v[{p}:{p+1}], v{12+mt}, s[20:23], 0 offen offset:{16*q}")
        e("s_nop 1")
    e("s_waitcnt vmcnt(0)")
    stamp(); stamp_store(8, 0)
    e("L1_end:")
    e("s_endpgm")

WBASE2 = 34048
def k2():
    e(".globl wn_out_kernel")
    e(".p2align 8")
    e(".type wn_out_kernel,@function")
    e("wn_out_kernel:")
    e("s_cmp_ge_u32 s2, 256")
    e("s_cbranch_scc1 L2_end")
    e("s_and_b32 s24, s2, 7")
    e("s_lshr_b32 s25, s2, 4")
    e("s_lshl_b32 s25, s25, 3")
    e("s_add_u32 s24, s24, s25")
    e("s_cmp_ge_u32 s24, 125")
    e("s_cbranch_scc1 L2_end")
    e("s_lshr_b32 s27, s2, 3")
    e("s_and_b32 s27, s27, 1                ; ct")
    e("s_load_dwordx2 s[4:5], s[0:1], 16    ; w_o")
    e("s_load_dwordx4 s[8:11], s[0:1], 24")
    e("s_load_dwordx2 s[6:7], s[0:1], 40    ; ws")
    e("v_lshrrev_b32 v1, 6, v0")
    e("v_and_b32 v2, 63, v0")
    e("s_nop 0")
    e("v_readfirstlane_b32 s31, v1")
    stamp()
    e("s_waitcnt lgkmcnt(0)")
    e("s_mov_b32 s12, s6")
    e("s_mov_b32 s13, s7")
    e("s_mov_b32 s14, 4096000")
    e("s_mov_b32 s15, 0x00020000")
    e("s_mov_b32 s16, s4")
    e("s_mov_b32 s17, s5")
    e("s_mov_b32 s18, 131072")
    e("s_mov_b32 s19, 0x00020000")
    e("s_mov_b32 s20, s8")
    e("s_mov_b32 s21, s9")
    e("s_mov_b32 s22, 4096000")
    e("s_mov_b32 s23, 0x00020000")
    e("s_lshr_b32 s32, s31, 1               ; wm")
    e("s_and_b32 s33, s31, 1                ; wn")
    e("s_lshl_b32 s34, s24, 15")
    e("v_lshlrev_b32 v3, 4, v0")
    e("v_add_u32 v3, s34, v3")
    ZST = 64
    for it in range(8):
        e(f"s_mov_b32 s36, {it*4096}")
        e(f"buffer_load_dwordx4 v[{ZST+4*it}:{ZST+4*it+3}], v3, s[12:15], s36 offen")
    e("v_and_b32 v4, 15, v0")
    e("v_lshrrev_b32 v5, 4, v0")
    e("v_and_b32 v6, 3, v5")
    e("v_lshlrev_b32 v6, 2, v6")
    e("v_xor_b32 v4, v4, v6                 ; g")
    e("v_lshlrev_b32 v4, 4, v4")
    e("v_lshlrev_b32 v5, 9, v5")
    e("v_add_u32 v4, v4, v5")
    e("s_lshl_b32 s35, s27, 8")
    e("v_add_u32 v4, s35, v4                ; v4 = w_o voffset")
    e(f"v_lshlrev_b32 v5, 4, v0")
    e(f"v_add_u32 v5, {WBASE2}, v5")
    WST = 96
    for u in range(16):
        e(f"s_mov_b32 s36, {u*8192}")
        e(f"buffer_load_dwordx4 v[{WST+4*u}:{WST+4*u+3}], v4, s[16:19], s36 offen")
    e("v_lshrrev_b32 v6, 5, v0")
    e(f"v_mul_u32_u24 v6, {XROW}, v6")
    e("v_and_b32 v7, 31, v0")
    e("v_lshlrev_b32 v7, 4, v7")
    e("v_add_u32 v6, v6, v7")
    e("v_and_b32 v8, 31, v2")
    e("s_lshl_b32 s36, s32, 5")
    e("v_add_u32 v8, s36, v8")
    e(f"v_mul_u32_u24 v8, {XROW}, v8")
    e("v_lshrrev_b32 v9, 5, v2              ; hi")
    e("v_lshlrev_b32 v10, 4, v9")
    e("v_add_u32 v8, v8, v10")
    e("v_and_b32 v10, 15, v2")
    e("v_lshrrev_b32 v10, 2, v10            ; r")
    e("v_and_b32 v11, 3, v2                 ; c4")
    e("v_lshrrev_b32 v12, 4, v2")
    e("v_and_b32 v12, 1, v12                ; q1")
    e("v_lshlrev_b32 v13, 1, v12")
    e("v_lshrrev_b32 v14, 1, v11")
    e("v_add_u32 v13, v13, v14")
    e("s_lshl_b32 s36, s33, 3")
    e("v_add_u32 v13, s36, v13              ; g = wn*8 + q1*2 + (c4>>1)")
    e("v_lshlrev_b32 v14, 2, v10")
    e("v_xor_b32 v13, v13, v14")
    e("v_lshlrev_b32 v13, 4, v13")
    e("v_and_b32 v14, 1, v11")
    e("v_lshlrev_b32 v14, 3, v14")
    e("v_add_u32 v13, v13, v14")
    e("v_lshlrev_b32 v14, 3, v9")
    e("v_add_u32 v14, v14, v10")
    e("v_lshlrev_b32 v14, 8, v14")
    e("v_add_u32 v13, v13, v14")
    e(f"v_add_u32 v10, {WBASE2}, v13        ; nt=0")
    e("v_xor_b32 v11, 64, v10               ; nt=1")
    for i in range(32): e(f"v_mov_b32 v{192+i}, 0")
    stamp()
    e("s_waitcnt vmcnt(16)")
    for it in range(8):
        e(f"ds_write_b128 v6, v[{ZST+4*it}:{ZST+4*it+3}] offset:{it*8*XROW}")
    for u in range(16):
        e(f"s_waitcnt vmcnt({15-u})")
        e(f"ds_write_b128 v5, v[{WST+4*u}:{WST+4*u+3}] offset:{u*4096}")
    e("s_waitcnt lgkmcnt(0)")
    e("s_barrier")
    FR = [160, 172]
    def reads(ks):
        fb = FR[ks % 2]
        e(f"ds_read_b128 v[{fb}:{fb+3}], v8 offset:{ks*32}")
        for nt in range(2):
            e(f"ds_read_b64_tr_b16 v[{fb+4+4*nt}:{fb+4+4*nt+1}], v{10+nt} offset:{ks*4096}")
            e(f"ds_read_b64_tr_b16 v[{fb+4+4*nt+2}:{fb+4+4*nt+3}], v{10+nt} offset:{ks*4096+1024}")
    stamp()
    reads(0)
    for ks in range(16):
        if ks + 1 < 16:
            reads(ks + 1); cnt = 5
        else: cnt = 0
        e(f"s_waitcnt lgkmcnt({cnt})")
        fb = FR[ks % 2]
        for nt in range(2):
            acc = 192 + nt*16
            e(f"v_mfma_f32_32x32x16_bf16 v[{acc}:{acc+15}], v[{fb+4+4*nt}:{fb+4+4*nt+3}], v[{fb}:{fb+3}], v[{acc}:{acc+15}]")
    stamp()
    e("s_nop 15")
    e("s_nop 7")
    e("v_and_b32 v12, 31, v2")
    e("s_lshl_b32 s36, s24, 6")
    e("s_lshl_b32 s37, s32, 5")
    e("s_add_u32 s36, s36, s37")
    e("v_add_u32 v12, s36, v12")
    e("v_lshlrev_b32 v12, 9, v12")
    e("s_lshl_b32 s36, s27, 8")
    e("s_lshl_b32 s37, s33, 7")
    e("s_add_u32 s36, s36, s37")
    e("v_lshlrev_b32 v13, 3, v9")
    e("v_add_u32 v13, s36, v13")
    e("v_add_u32 v12, v12, v13")
    for nt in range(2):
        for q in range(4):
            f = 192 + nt*16 + 4*q
            p = 64 + nt*8 + 2*q
            e(f"v_cvt_pk_bf16_f32 v{p}, v{f}, v{f+1}")
            e(f"v_cvt_pk_bf16_f32 v{p+1}, v{f+2}, v{f+3}")
    for nt in range(2):
        for q in range(4):
            p = 64 + nt*8 + 2*q
            e(f"buffer_store_dwordx2 v[{p}:{p+1}], v12, s[20:23], 0 offen offset:{nt*64+16*q}")
    e("s_waitcnt vmcnt(0)")
    stamp(); stamp_store(6, 1)
    e("L2_end:")
    e("s_endpgm")

k1()
k2()
e('.section .rodata,"a"')
for name in ("wn_conv_kernel", "wn_out_kernel"):
    e(".p2align 6")
    e(f".amdhsa_kernel {name}")
    e("  .amdhsa_next_free_vgpr 256")
    e("  .amdhsa_next_free_sgpr 64")
    e("  .amdhsa_accum_offset 256")
    e("  .amdhsa_group_segment_fixed_size 0")
    e("  .amdhsa_kernarg_size 48")
    e("  .amdhsa_user_sgpr_count 2")
    e("  .amdhsa_user_sgpr_kernarg_segment_ptr 1")
    e("  .amdhsa_system_sgpr_workgroup_id_x 1")
    e(".end_amdhsa_kernel")
out = sys.argv[1] if len(sys.argv) > 1 else "standalone__autoregressive_conv_wavenet__speech.s"
open(out, "w").write("\n".join(L) + "\n")
```

```python
import sys, os
L = []
def e(s=""): L.append(s)
STAMP = bool(os.environ.get("STAMP"))
_nst = [0]
def stamp():
    if not STAMP: return
    i = _nst[0]; _nst[0] += 1
    e(f"s_memtime s[{64+2*i}:{65+2*i}]")
    e("s_waitcnt lgkmcnt(0)")

HDR = open("standalone__autoregressive_conv_wavenet__speech.s.ref").read().split("\n")
for line in HDR:
    if "@launch" in line: break
    if line.startswith(";"): e(line)
NAME = "standalone__autoregressive_conv_wavenet__speech_kernel"
e("; @launch grid=(256,1,1) block=(256,1,1) lds=131072")
e('.amdgcn_target "amdgcn-amd-amdhsa--gfx950"')
e(".text")
e(f".globl {NAME}")
e(".p2align 8")
e(f".type {NAME},@function")
e(f"{NAME}:")
XROW = 528
WBASE = 71936
e("s_cmp_ge_u32 s2, 256")
e("s_cbranch_scc1 L_end")
e("s_load_dwordx4 s[4:7], s[0:1], 0      ; x, w")
e("s_load_dwordx4 s[48:51], s[0:1], 16   ; w_o, out")
e("s_load_dwordx4 s[52:55], s[0:1], 32")
e("s_and_b32 s24, s2, 7")
e("s_lshr_b32 s25, s2, 3")
e("s_lshr_b32 s26, s25, 2")
e("s_lshl_b32 s27, s24, 3")
e("s_add_u32 s26, s26, s27              ; rtg 0..63")
e("s_and_b32 s27, s25, 3                ; ct")
e("s_lshr_b32 s28, s26, 5               ; b")
e("s_and_b32 s29, s26, 31               ; rt")
e("s_mul_i32 s30, s28, 2048000")
e("v_lshrrev_b32 v1, 6, v0")
e("v_and_b32 v2, 63, v0")
e("s_nop 0")
e("v_readfirstlane_b32 s31, v1")
stamp()
e("s_waitcnt lgkmcnt(0)")
e("s_add_u32 s12, s4, s30")
e("s_addc_u32 s13, s5, 0")
e("s_mov_b32 s14, 2048000")
e("s_mov_b32 s15, 0x00020000")
e("s_mov_b32 s16, s6")
e("s_mov_b32 s17, s7")
e("s_mov_b32 s18, 786432")
e("s_mov_b32 s19, 0x00020000")
e("s_add_u32 s20, s54, s30")
e("s_addc_u32 s21, s55, 0")
e("s_mov_b32 s22, 2048000")
e("s_mov_b32 s23, 0x00020000")
e("s_lshr_b32 s32, s31, 1               ; wm")
e("s_and_b32 s33, s31, 1                ; wn")
e("s_lshl_b32 s34, s29, 16")
e("s_sub_u32 s34, s34, 2048")
e("v_lshlrev_b32 v3, 4, v0")
e("v_add_u32 v3, s34, v3")
XST = 56
for it in range(17):
    e(f"buffer_load_dwordx4 v[{XST+4*it}:{XST+4*it+3}], v3, s[12:15], 0 offen")
    if it < 16: e("v_add_u32 v3, 0x1000, v3")
e("v_and_b32 v4, 15, v0")
e("v_lshrrev_b32 v5, 4, v0")
e("v_and_b32 v6, 3, v5")
e("v_lshlrev_b32 v6, 2, v6")
e("v_xor_b32 v4, v4, v6")
e("v_and_b32 v6, 7, v4")
e("v_lshlrev_b32 v6, 4, v6")
e("v_lshrrev_b32 v7, 3, v4")
e("v_lshlrev_b32 v7, 9, v7")
e("v_add_u32 v6, v6, v7")
e("v_lshlrev_b32 v5, 10, v5")
e("v_add_u32 v6, v6, v5")
e("s_lshl_b32 s35, s27, 7")
e("v_add_u32 v4, s35, v6")
e("v_lshlrev_b32 v5, 4, v0")
e(f"v_add_u32 v5, {WBASE}, v5")
WST = [124, 140, 40, 24]
def wload1(c, u):
    st = WST[c % 4]
    e(f"s_mov_b32 s36, {c*65536 + u*16384}")
    e(f"buffer_load_dwordx4 v[{st+4*u}:{st+4*u+3}], v4, s[16:19], s36 offen")
for c in range(4):
    for u in range(4): wload1(c, u)
e("v_lshrrev_b32 v6, 5, v0")
e(f"v_mul_u32_u24 v6, {XROW}, v6")
e("v_and_b32 v7, 31, v0")
e("v_lshlrev_b32 v7, 4, v7")
e("v_add_u32 v6, v6, v7")
e(f"v_add_u32 v7, {16*8*XROW}, v6")
e("v_and_b32 v8, 31, v2")
e("s_lshl_b32 s36, s32, 6")
e("v_add_u32 v8, s36, v8")
e(f"v_mul_u32_u24 v8, {XROW}, v8")
e("v_lshrrev_b32 v9, 5, v2              ; hi")
e("v_lshlrev_b32 v10, 4, v9")
e("v_add_u32 v8, v8, v10")
e("v_and_b32 v10, 15, v2")
e("v_lshrrev_b32 v10, 2, v10            ; r")
e("v_and_b32 v11, 3, v2                 ; c4")
e("v_lshrrev_b32 v12, 4, v2")
e("v_and_b32 v12, 1, v12                ; q1")
e("v_lshlrev_b32 v13, 1, v12")
e("v_lshrrev_b32 v14, 1, v11")
e("v_add_u32 v13, v13, v14              ; q1*2 + (c4>>1)")
e("v_lshlrev_b32 v14, 2, v10")
e("v_xor_b32 v15, v13, v14")
e("v_lshlrev_b32 v15, 4, v15")
e("v_and_b32 v14, 1, v11")
e("v_lshlrev_b32 v14, 3, v14")
e("v_add_u32 v15, v15, v14              ; + half*8")
e("v_lshlrev_b32 v14, 3, v9")
e("v_add_u32 v14, v14, v10              ; hi*8 + r")
e("v_lshlrev_b32 v16, 9, v14")
e("v_add_u32 v16, v16, v15")
e("v_lshlrev_b32 v14, 8, v14")
e("v_add_u32 v13, v15, v14")
e("s_lshl_b32 s36, s33, 6")
e("v_xor_b32 v13, s36, v13")
e(f"v_add_u32 v10, {WBASE}, v13")
e("v_xor_b32 v11, 0x80, v10")
for i in range(64): e(f"v_mov_b32 v{192+i}, 0")
stamp()
e("s_waitcnt vmcnt(16)")
for it in range(17):
    if it < 16: e(f"ds_write_b128 v6, v[{XST+4*it}:{XST+4*it+3}] offset:{it*8*XROW}")
    else: e(f"ds_write_b128 v7, v[{XST+4*it}:{XST+4*it+3}]")
def wwrite1(c, u):
    st = WST[c % 4]
    e(f"ds_write_b128 v5, v[{st+4*u}:{st+4*u+3}] offset:{(c%3)*16384+u*4096}")
e("s_waitcnt vmcnt(12)")
for u in range(4): wwrite1(0, u)
e("s_waitcnt vmcnt(8)")
for u in range(4): wwrite1(1, u)
e("s_waitcnt lgkmcnt(0)")
e("s_barrier")
stamp()
FR = [160, 176]
lds = []
def lop(text, tag):
    e(text); lds.append(tag)
def wait_for(tags):
    last = max(i for i, t in enumerate(lds) if t in tags)
    n = len(lds) - 1 - last
    e(f"s_waitcnt lgkmcnt({min(n,15)})")
def rd_x(ks, mt):
    j, s = ks >> 4, ks & 15
    fb = FR[ks % 2]
    lop(f"ds_read_b128 v[{fb+4*mt}:{fb+4*mt+3}], v8 offset:{(mt*32 + 4 - 2*j)*XROW + s*32}", ("x", ks, mt))
def rd_w(ks, fg):
    c, kk = ks >> 2, ks & 3
    fb = FR[ks % 2]
    wo = (c % 3)*16384 + kk*4096
    lop(f"ds_read_b64_tr_b16 v[{fb+8+4*fg}:{fb+8+4*fg+1}], v{10+fg} offset:{wo}", ("w", ks, fg))
    lop(f"ds_read_b64_tr_b16 v[{fb+8+4*fg+2}:{fb+8+4*fg+3}], v{10+fg} offset:{wo+1024}", ("w", ks, fg))
def mfma(ks, mt, fg):
    fb = FR[ks % 2]
    acc = 192 + (mt*2+fg)*16
    e(f"v_mfma_f32_32x32x16_bf16 v[{acc}:{acc+15}], v[{fb+8+4*fg}:{fb+8+4*fg+3}], v[{fb+4*mt}:{fb+4*mt+3}], v[{acc}:{acc+15}]")
WO = 24
def woload(u):
    e(f"s_mov_b32 s36, {u*4096}")
    e(f"buffer_load_dwordx4 v[{WO+4*u}:{WO+4*u+3}], v17, s[56:59], s36 offen")
rd_x(0, 0); rd_w(0, 0); rd_w(0, 1); rd_x(0, 1)
for c in range(12):
    for kk in range(4):
        ks = 4*c + kk
        nxt = ks + 1 < 48
        wait_for({("x", ks, 0), ("w", ks, 0)}); mfma(ks, 0, 0)
        if nxt: rd_x(ks+1, 0); rd_w(ks+1, 0)
        wait_for({("w", ks, 1)}); mfma(ks, 0, 1)
        if nxt: rd_w(ks+1, 1)
        wait_for({("x", ks, 1)}); mfma(ks, 1, 0)
        if nxt: rd_x(ks+1, 1)
        if c + 4 <= 11: wload1(c + 4, kk)
        mfma(ks, 1, 1)
        if c + 2 <= 11:
            if kk == 0: e("s_waitcnt vmcnt(%d)" % (4 if c + 3 <= 11 else 0))
            lds.append(("ww", c, kk)); wwrite1(c + 2, kk)
    if c < 11: e("s_barrier")
stamp()
e("s_mov_b32 s56, s48")
e("s_mov_b32 s57, s49")
e("s_mov_b32 s58, 131072")
e("s_mov_b32 s59, 0x00020000")
e("v_and_b32 v17, 31, v0")
e("v_lshrrev_b32 v18, 5, v0")
e("v_and_b32 v19, 3, v18")
e("v_lshlrev_b32 v19, 2, v19")
e("v_xor_b32 v17, v17, v19")
e("v_lshlrev_b32 v17, 4, v17")
e("v_lshlrev_b32 v18, 9, v18")
e("v_add_u32 v17, v17, v18")
for u in range(32): woload(u)
e("v_lshlrev_b32 v18, 4, v0")
e("v_and_b32 v12, 31, v2")
e("s_lshl_b32 s36, s29, 7")
e("s_lshl_b32 s37, s32, 6")
e("s_add_u32 s36, s36, s37")
e("v_add_u32 v12, s36, v12")
e("v_lshlrev_b32 v12, 9, v12")
e("s_lshl_b32 s36, s27, 7")
e("s_lshl_b32 s37, s33, 6")
e("s_add_u32 s36, s36, s37")
e("v_lshlrev_b32 v13, 3, v9")
e("v_add_u32 v13, s36, v13")
e("v_add_u32 v12, v12, v13")
e("v_add_u32 v13, 0x4000, v12")
e("s_mov_b32 s40, 0x4038aa3b")
e("s_mov_b32 s41, 0xbfb8aa3b")
e("s_mov_b32 s42, 0x41f00000")
e("s_mov_b32 s43, 0x42700000")
TA, TB, PK = 160, 168, 176
for mt in range(2):
    for q in range(4):
        f0 = 192 + (mt*2)*16 + 4*q; g0 = f0 + 16
        R = range(4)
        for i in R: e(f"v_mul_f32 v{TA+i}, s40, v{f0+i}")
        for i in R: e(f"v_mul_f32 v{TB+i}, s41, v{g0+i}")
        for i in R: e(f"v_min_f32 v{TA+i}, s42, v{TA+i}")
        for i in R: e(f"v_min_f32 v{TB+i}, s43, v{TB+i}")
        for i in R: e(f"v_exp_f32 v{TA+i}, v{TA+i}")
        for i in R: e(f"v_exp_f32 v{TB+i}, v{TB+i}")
        for i in R: e(f"v_add_f32 v{TA+4+i}, 1.0, v{TA+i}")
        for i in R: e(f"v_fma_f32 v{TB+i}, v{TB+i}, v{TA+4+i}, v{TA+4+i}")
        for i in R: e(f"v_rcp_f32 v{TB+i}, v{TB+i}")
        for i in R: e(f"v_add_f32 v{TA+i}, -1.0, v{TA+i}")
        for i in R: e(f"v_mul_f32 v{TA+i}, v{TA+i}, v{TB+i}")
        p = PK + (mt*4+q)*2
        e(f"v_cvt_pk_bf16_f32 v{p}, v{TA}, v{TA+1}")
        e(f"v_cvt_pk_bf16_f32 v{p+1}, v{TA+2}, v{TA+3}")
        e(f"buffer_store_dwordx2 v[{p}:{p+1}], v{12+mt}, s[20:23], 0 offen offset:{16*q} sc0 sc1")
stamp()
e("s_barrier")
for u in range(32):
    e(f"s_waitcnt vmcnt({8 + 31 - u})")
    e(f"ds_write_b128 v18, v[{WO+4*u}:{WO+4*u+3}] offset:{u*4096}" if u < 16 else f"ds_write_b128 v19, v[{WO+4*u}:{WO+4*u+3}] offset:{(u-16)*4096}")
    if u == 0: e("v_add_u32 v19, 0x10000, v18")
e("s_waitcnt vmcnt(0) lgkmcnt(0)")
e("s_barrier")
e("s_mov_b32 s60, s52")
e("s_mov_b32 s61, s53")
e("s_mov_b32 s62, 256")
e("s_mov_b32 s63, 0x00020000")
e("s_lshl_b32 s36, s26, 2")
e("v_mov_b32 v20, s36")
e("v_mov_b32 v21, 1")
e("s_cmp_lg_u32 s31, 0")
e("s_cbranch_scc1 L_wait_done")
e("s_mov_b64 exec, 1")
e("buffer_atomic_add v21, v20, s[60:63], 0 offen sc1")
e("L_poll:")
e("buffer_load_dword v22, v20, s[60:63], 0 offen sc0 sc1")
e("s_waitcnt vmcnt(0)")
e("v_readfirstlane_b32 s38, v22")
e("s_cmp_ge_u32 s38, 4")
e("s_cbranch_scc1 L_poll_done")
e("s_sleep 1")
e("s_branch L_poll")
e("L_poll_done:")
e("s_mov_b64 exec, -1")
e("L_wait_done:")
e("s_barrier")
stamp()
e("v_and_b32 v20, 31, v2")
e("s_lshl_b32 s36, s29, 7")
e("s_lshl_b32 s37, s27, 5")
e("s_add_u32 s36, s36, s37")
e("v_add_u32 v20, s36, v20")
e("v_lshlrev_b32 v21, 9, v20")
e("v_lshlrev_b32 v22, 4, v9")
e("v_add_u32 v21, v21, v22")
ZF = 24
for ks in range(16):
    e(f"buffer_load_dwordx4 v[{ZF+4*ks}:{ZF+4*ks+3}], v21, s[20:23], 0 offen offset:{ks*32} sc0 sc1")
e("s_lshl_b32 s36, s31, 7")
e("v_xor_b32 v16, s36, v16")
e("v_xor_b32 v17, 64, v16")
e("v_add_u32 v18, 0x10000, v16")
e("v_add_u32 v19, 0x10000, v17")
for i in range(32): e(f"v_mov_b32 v{192+i}, 0")
lds.clear()
WF = [96, 104]
def rd_wo(ks):
    fb = WF[ks % 2]
    for nt in range(2):
        a = (16 + nt) if ks < 8 else (18 + nt)
        o = (ks % 8) * 8192
        lop(f"ds_read_b64_tr_b16 v[{fb+4*nt}:{fb+4*nt+1}], v{a} offset:{o}", ("wo", ks))
        lop(f"ds_read_b64_tr_b16 v[{fb+4*nt+2}:{fb+4*nt+3}], v{a} offset:{o+2048}", ("wo", ks))
rd_wo(0)
for ks in range(16):
    if ks + 1 < 16: rd_wo(ks + 1)
    wait_for({("wo", ks)})
    e(f"s_waitcnt vmcnt({15-ks})")
    fb = WF[ks % 2]
    for nt in range(2):
        acc = 192 + nt*16
        e(f"v_mfma_f32_32x32x16_bf16 v[{acc}:{acc+15}], v[{fb+4*nt}:{fb+4*nt+3}], v[{ZF+4*ks}:{ZF+4*ks+3}], v[{acc}:{acc+15}]")
e("s_mov_b32 s56, s50")
e("s_mov_b32 s57, s51")
e("s_mov_b32 s58, 4096000")
e("s_mov_b32 s59, 0x00020000")
e("s_lshl_b32 s36, s31, 7")
e("v_lshlrev_b32 v22, 3, v9")
e("v_add_u32 v22, s36, v22")
e("v_lshlrev_b32 v21, 9, v20")
e("v_add_u32 v21, v21, v22")
e("v_add_u32 v21, s30, v21")
e("v_cmp_gt_u32 vcc, 4000, v20")
e("s_nop 10")
for nt in range(2):
    for q in range(4):
        f = 192 + nt*16 + 4*q
        p = 112 + nt*8 + 2*q
        e(f"v_cvt_pk_bf16_f32 v{p}, v{f}, v{f+1}")
        e(f"v_cvt_pk_bf16_f32 v{p+1}, v{f+2}, v{f+3}")
e("s_and_saveexec_b64 s[44:45], vcc")
e("s_cbranch_execz L_nost")
for nt in range(2):
    for q in range(4):
        p = 112 + nt*8 + 2*q
        e(f"buffer_store_dwordx2 v[{p}:{p+1}], v21, s[56:59], 0 offen offset:{nt*64+16*q}")
e("L_nost:")
e("s_mov_b64 exec, -1")
e("s_waitcnt vmcnt(0)")
stamp()
if STAMP:
    e("s_cmp_lg_u32 s31, 0")
    e("s_cbranch_scc1 L_end")
    e(f"s_add_u32 s60, s54, {32<<20}")
    e("s_addc_u32 s61, s55, 0")
    e("s_mov_b32 s62, 65536")
    e("s_mov_b32 s63, 0x00020000")
    e("s_lshl_b32 s59, s2, 6")
    e("v_mov_b32 v20, s59")
    for i in range(_nst[0]):
        e(f"v_mov_b32 v21, s{64+2*i}")
        e(f"buffer_store_dword v21, v20, s[60:63], 0 offen offset:{4*i}")
    e("s_waitcnt vmcnt(0)")
e("L_end:")
e("s_endpgm")
e('.section .rodata,"a"')
e(".p2align 6")
e(f".amdhsa_kernel {NAME}")
e("  .amdhsa_next_free_vgpr 256")
e("  .amdhsa_next_free_sgpr 96")
e("  .amdhsa_accum_offset 256")
e("  .amdhsa_group_segment_fixed_size 0")
e("  .amdhsa_kernarg_size 48")
e("  .amdhsa_user_sgpr_count 2")
e("  .amdhsa_user_sgpr_kernarg_segment_ptr 1")
e("  .amdhsa_system_sgpr_workgroup_id_x 1")
e(".end_amdhsa_kernel")
open(sys.argv[1], "w").write("\n".join(L) + "\n")
```

```python
import sys, os
L = []
def e(s=""): L.append(s)
STAMP = bool(os.environ.get("STAMP"))
_nst = [0]
def stamp():
    if not STAMP: return
    i = _nst[0]; _nst[0] += 1
    e(f"s_memtime s[{64+2*i}:{65+2*i}]")
    e("s_waitcnt lgkmcnt(0)")

HDR = open("standalone__autoregressive_conv_wavenet__speech.s.ref").read().split("\n")
for line in HDR:
    if "@launch" in line: break
    if line.startswith(";"): e(line)
NAME = "wn_conv_kernel"
e("; @launch kernel=wn_conv_kernel grid=(256,1,1) block=(256,1,1) lds=121088")
e("; @launch kernel=wn_out_kernel grid=(256,1,1) block=(256,1,1) lds=99584")
e('.amdgcn_target "amdgcn-amd-amdhsa--gfx950"')
e(".text")
e(f".globl {NAME}")
e(".p2align 8")
e(f".type {NAME},@function")
e(f"{NAME}:")
XROW = 528
WBASE = 71936
e("s_cmp_ge_u32 s2, 256")
e("s_cbranch_scc1 L_end")
e("s_load_dwordx4 s[4:7], s[0:1], 0      ; x, w")
e("s_load_dwordx4 s[48:51], s[0:1], 16   ; w_o, out")
e("s_load_dwordx4 s[52:55], s[0:1], 32")
e("s_and_b32 s24, s2, 7")
e("s_lshr_b32 s25, s2, 3")
e("s_lshr_b32 s26, s25, 2")
e("s_lshl_b32 s27, s24, 3")
e("s_add_u32 s26, s26, s27              ; rtg 0..63")
e("s_and_b32 s27, s25, 3                ; ct")
e("s_lshr_b32 s28, s26, 5               ; b")
e("s_and_b32 s29, s26, 31               ; rt")
e("s_mul_i32 s30, s28, 2048000")
e("v_lshrrev_b32 v1, 6, v0")
e("v_and_b32 v2, 63, v0")
e("s_nop 0")
e("v_readfirstlane_b32 s31, v1")
stamp()
e("s_waitcnt lgkmcnt(0)")
e("s_add_u32 s12, s4, s30")
e("s_addc_u32 s13, s5, 0")
e("s_mov_b32 s14, 2048000")
e("s_mov_b32 s15, 0x00020000")
e("s_mov_b32 s16, s6")
e("s_mov_b32 s17, s7")
e("s_mov_b32 s18, 786432")
e("s_mov_b32 s19, 0x00020000")
e("s_add_u32 s20, s54, s30")
e("s_addc_u32 s21, s55, 0")
e("s_mov_b32 s22, 2048000")
e("s_mov_b32 s23, 0x00020000")
e("s_lshr_b32 s32, s31, 1               ; wm")
e("s_and_b32 s33, s31, 1                ; wn")
e("s_lshl_b32 s34, s29, 16")
e("s_sub_u32 s34, s34, 2048")
e("v_lshlrev_b32 v3, 4, v0")
e("v_add_u32 v3, s34, v3")
XST = 56
for it in range(17):
    e(f"buffer_load_dwordx4 v[{XST+4*it}:{XST+4*it+3}], v3, s[12:15], 0 offen")
    if it < 16: e("v_add_u32 v3, 0x1000, v3")
e("v_and_b32 v4, 15, v0")
e("v_lshrrev_b32 v5, 4, v0")
e("v_and_b32 v6, 3, v5")
e("v_lshlrev_b32 v6, 2, v6")
e("v_xor_b32 v4, v4, v6")
e("v_and_b32 v6, 7, v4")
e("v_lshlrev_b32 v6, 4, v6")
e("v_lshrrev_b32 v7, 3, v4")
e("v_lshlrev_b32 v7, 9, v7")
e("v_add_u32 v6, v6, v7")
e("v_lshlrev_b32 v5, 10, v5")
e("v_add_u32 v6, v6, v5")
e("s_lshl_b32 s35, s27, 7")
e("v_add_u32 v4, s35, v6")
e("v_lshlrev_b32 v5, 4, v0")
e(f"v_add_u32 v5, {WBASE}, v5")
WST = [124, 140, 40, 24]
def wload1(c, u):
    st = WST[c % 4]
    e(f"s_mov_b32 s36, {c*65536 + u*16384}")
    e(f"buffer_load_dwordx4 v[{st+4*u}:{st+4*u+3}], v4, s[16:19], s36 offen")
for c in range(4):
    for u in range(4): wload1(c, u)
e("v_lshrrev_b32 v6, 5, v0")
e(f"v_mul_u32_u24 v6, {XROW}, v6")
e("v_and_b32 v7, 31, v0")
e("v_lshlrev_b32 v7, 4, v7")
e("v_add_u32 v6, v6, v7")
e(f"v_add_u32 v7, {16*8*XROW}, v6")
e("v_and_b32 v8, 31, v2")
e("s_lshl_b32 s36, s32, 6")
e("v_add_u32 v8, s36, v8")
e(f"v_mul_u32_u24 v8, {XROW}, v8")
e("v_lshrrev_b32 v9, 5, v2              ; hi")
e("v_lshlrev_b32 v10, 4, v9")
e("v_add_u32 v8, v8, v10")
e("v_and_b32 v10, 15, v2")
e("v_lshrrev_b32 v10, 2, v10            ; r")
e("v_and_b32 v11, 3, v2                 ; c4")
e("v_lshrrev_b32 v12, 4, v2")
e("v_and_b32 v12, 1, v12                ; q1")
e("v_lshlrev_b32 v13, 1, v12")
e("v_lshrrev_b32 v14, 1, v11")
e("v_add_u32 v13, v13, v14              ; q1*2 + (c4>>1)")
e("v_lshlrev_b32 v14, 2, v10")
e("v_xor_b32 v15, v13, v14")
e("v_lshlrev_b32 v15, 4, v15")
e("v_and_b32 v14, 1, v11")
e("v_lshlrev_b32 v14, 3, v14")
e("v_add_u32 v15, v15, v14              ; + half*8")
e("v_lshlrev_b32 v14, 3, v9")
e("v_add_u32 v14, v14, v10              ; hi*8 + r")
e("v_lshlrev_b32 v16, 9, v14")
e("v_add_u32 v16, v16, v15")
e("v_lshlrev_b32 v14, 8, v14")
e("v_add_u32 v13, v15, v14")
e("s_lshl_b32 s36, s33, 6")
e("v_xor_b32 v13, s36, v13")
e(f"v_add_u32 v10, {WBASE}, v13")
e("v_xor_b32 v11, 0x80, v10")
for i in range(64): e(f"v_mov_b32 v{192+i}, 0")
stamp()
e("s_waitcnt vmcnt(16)")
for it in range(17):
    if it < 16: e(f"ds_write_b128 v6, v[{XST+4*it}:{XST+4*it+3}] offset:{it*8*XROW}")
    else: e(f"ds_write_b128 v7, v[{XST+4*it}:{XST+4*it+3}]")
def wwrite1(c, u):
    st = WST[c % 4]
    e(f"ds_write_b128 v5, v[{st+4*u}:{st+4*u+3}] offset:{(c%3)*16384+u*4096}")
e("s_waitcnt vmcnt(12)")
for u in range(4): wwrite1(0, u)
e("s_waitcnt vmcnt(8)")
for u in range(4): wwrite1(1, u)
e("s_waitcnt lgkmcnt(0)")
e("s_barrier")
stamp()
FR = [160, 176]
lds = []
def lop(text, tag):
    e(text); lds.append(tag)
def wait_for(tags):
    last = max(i for i, t in enumerate(lds) if t in tags)
    n = len(lds) - 1 - last
    e(f"s_waitcnt lgkmcnt({min(n,15)})")
def rd_x(ks, mt):
    j, s = ks >> 4, ks & 15
    fb = FR[ks % 2]
    lop(f"ds_read_b128 v[{fb+4*mt}:{fb+4*mt+3}], v8 offset:{(mt*32 + 4 - 2*j)*XROW + s*32}", ("x", ks, mt))
def rd_w(ks, fg):
    c, kk = ks >> 2, ks & 3
    fb = FR[ks % 2]
    wo = (c % 3)*16384 + kk*4096
    lop(f"ds_read_b64_tr_b16 v[{fb+8+4*fg}:{fb+8+4*fg+1}], v{10+fg} offset:{wo}", ("w", ks, fg))
    lop(f"ds_read_b64_tr_b16 v[{fb+8+4*fg+2}:{fb+8+4*fg+3}], v{10+fg} offset:{wo+1024}", ("w", ks, fg))
def mfma(ks, mt, fg):
    fb = FR[ks % 2]
    acc = 192 + (mt*2+fg)*16
    e(f"v_mfma_f32_32x32x16_bf16 v[{acc}:{acc+15}], v[{fb+8+4*fg}:{fb+8+4*fg+3}], v[{fb+4*mt}:{fb+4*mt+3}], v[{acc}:{acc+15}]")
WO = 24
def woload(u):
    e(f"s_mov_b32 s36, {u*4096}")
    e(f"buffer_load_dwordx4 v[{WO+4*u}:{WO+4*u+3}], v17, s[56:59], s36 offen")
rd_x(0, 0); rd_w(0, 0); rd_w(0, 1); rd_x(0, 1)
for c in range(12):
    for kk in range(4):
        ks = 4*c + kk
        nxt = ks + 1 < 48
        wait_for({("x", ks, 0), ("w", ks, 0)}); mfma(ks, 0, 0)
        if nxt: rd_x(ks+1, 0); rd_w(ks+1, 0)
        wait_for({("w", ks, 1)}); mfma(ks, 0, 1)
        if nxt: rd_w(ks+1, 1)
        wait_for({("x", ks, 1)}); mfma(ks, 1, 0)
        if nxt: rd_x(ks+1, 1)
        if c + 4 <= 11: wload1(c + 4, kk)
        mfma(ks, 1, 1)
        if c + 2 <= 11:
            if kk == 0: e("s_waitcnt vmcnt(%d)" % (4 if c + 3 <= 11 else 0))
            lds.append(("ww", c, kk)); wwrite1(c + 2, kk)
    if c < 11: e("s_barrier")
stamp()

e("v_and_b32 v12, 31, v2")
e("s_lshl_b32 s36, s29, 7")
e("s_lshl_b32 s37, s32, 6")
e("s_add_u32 s36, s36, s37")
e("v_add_u32 v12, s36, v12")
e("v_lshlrev_b32 v12, 9, v12")
e("s_lshl_b32 s36, s27, 7")
e("s_lshl_b32 s37, s33, 6")
e("s_add_u32 s36, s36, s37")
e("v_lshlrev_b32 v13, 3, v9")
e("v_add_u32 v13, s36, v13")
e("v_add_u32 v12, v12, v13")
e("v_add_u32 v13, 0x4000, v12")
e("s_mov_b32 s40, 0x4038aa3b")
e("s_mov_b32 s41, 0xbfb8aa3b")
e("s_mov_b32 s42, 0x41f00000")
e("s_mov_b32 s43, 0x42700000")
TA, TB, PK = 160, 168, 176
for mt in range(2):
    for q in range(4):
        f0 = 192 + (mt*2)*16 + 4*q; g0 = f0 + 16
        R = range(4)
        for i in R: e(f"v_mul_f32 v{TA+i}, s40, v{f0+i}")
        for i in R: e(f"v_mul_f32 v{TB+i}, s41, v{g0+i}")
        for i in R: e(f"v_min_f32 v{TA+i}, s42, v{TA+i}")
        for i in R: e(f"v_min_f32 v{TB+i}, s43, v{TB+i}")
        for i in R: e(f"v_exp_f32 v{TA+i}, v{TA+i}")
        for i in R: e(f"v_exp_f32 v{TB+i}, v{TB+i}")
        for i in R: e(f"v_add_f32 v{TA+4+i}, 1.0, v{TA+i}")
        for i in R: e(f"v_fma_f32 v{TB+i}, v{TB+i}, v{TA+4+i}, v{TA+4+i}")
        for i in R: e(f"v_rcp_f32 v{TB+i}, v{TB+i}")
        for i in R: e(f"v_add_f32 v{TA+i}, -1.0, v{TA+i}")
        for i in R: e(f"v_mul_f32 v{TA+i}, v{TA+i}, v{TB+i}")
        p = PK + (mt*4+q)*2
        e(f"v_cvt_pk_bf16_f32 v{p}, v{TA}, v{TA+1}")
        e(f"v_cvt_pk_bf16_f32 v{p+1}, v{TA+2}, v{TA+3}")
        e(f"buffer_store_dwordx2 v[{p}:{p+1}], v{12+mt}, s[20:23], 0 offen offset:{16*q}")
stamp()
e("s_waitcnt vmcnt(0)")
e("L_end:")
e("s_endpgm")
WBASE2 = 34048
def k2():
    e(".globl wn_out_kernel")
    e(".p2align 8")
    e(".type wn_out_kernel,@function")
    e("wn_out_kernel:")
    e("s_cmp_ge_u32 s2, 256")
    e("s_cbranch_scc1 L2_end")
    e("s_and_b32 s24, s2, 7")
    e("s_lshr_b32 s25, s2, 4")
    e("s_lshl_b32 s25, s25, 3")
    e("s_add_u32 s24, s24, s25")
    e("s_cmp_ge_u32 s24, 125")
    e("s_cbranch_scc1 L2_end")
    e("s_lshr_b32 s27, s2, 3")
    e("s_and_b32 s27, s27, 1                ; ct")
    e("s_load_dwordx2 s[4:5], s[0:1], 16    ; w_o")
    e("s_load_dwordx4 s[8:11], s[0:1], 24")
    e("s_load_dwordx2 s[6:7], s[0:1], 40    ; ws")
    e("v_lshrrev_b32 v1, 6, v0")
    e("v_and_b32 v2, 63, v0")
    e("s_nop 0")
    e("v_readfirstlane_b32 s31, v1")
    e("s_waitcnt lgkmcnt(0)")
    e("s_mov_b32 s12, s6")
    e("s_mov_b32 s13, s7")
    e("s_mov_b32 s14, 4096000")
    e("s_mov_b32 s15, 0x00020000")
    e("s_mov_b32 s16, s4")
    e("s_mov_b32 s17, s5")
    e("s_mov_b32 s18, 131072")
    e("s_mov_b32 s19, 0x00020000")
    e("s_mov_b32 s20, s8")
    e("s_mov_b32 s21, s9")
    e("s_mov_b32 s22, 4096000")
    e("s_mov_b32 s23, 0x00020000")
    e("s_lshr_b32 s32, s31, 1               ; wm")
    e("s_and_b32 s33, s31, 1                ; wn")
    e("s_lshl_b32 s34, s24, 15")
    e("v_lshlrev_b32 v3, 4, v0")
    e("v_add_u32 v3, s34, v3")
    ZST = 64
    for it in range(8):
        e(f"s_mov_b32 s36, {it*4096}")
        e(f"buffer_load_dwordx4 v[{ZST+4*it}:{ZST+4*it+3}], v3, s[12:15], s36 offen")
    e("v_and_b32 v4, 15, v0")
    e("v_lshrrev_b32 v5, 4, v0")
    e("v_and_b32 v6, 3, v5")
    e("v_lshlrev_b32 v6, 2, v6")
    e("v_xor_b32 v4, v4, v6                 ; g")
    e("v_lshlrev_b32 v4, 4, v4")
    e("v_lshlrev_b32 v5, 9, v5")
    e("v_add_u32 v4, v4, v5")
    e("s_lshl_b32 s35, s27, 8")
    e("v_add_u32 v4, s35, v4                ; v4 = w_o voffset")
    e(f"v_lshlrev_b32 v5, 4, v0")
    e(f"v_add_u32 v5, {WBASE2}, v5")
    WST = 96
    for u in range(16):
        e(f"s_mov_b32 s36, {u*8192}")
        e(f"buffer_load_dwordx4 v[{WST+4*u}:{WST+4*u+3}], v4, s[16:19], s36 offen")
    e("v_lshrrev_b32 v6, 5, v0")
    e(f"v_mul_u32_u24 v6, {XROW}, v6")
    e("v_and_b32 v7, 31, v0")
    e("v_lshlrev_b32 v7, 4, v7")
    e("v_add_u32 v6, v6, v7")
    e("v_and_b32 v8, 31, v2")
    e("s_lshl_b32 s36, s32, 5")
    e("v_add_u32 v8, s36, v8")
    e(f"v_mul_u32_u24 v8, {XROW}, v8")
    e("v_lshrrev_b32 v9, 5, v2              ; hi")
    e("v_lshlrev_b32 v10, 4, v9")
    e("v_add_u32 v8, v8, v10")
    e("v_and_b32 v10, 15, v2")
    e("v_lshrrev_b32 v10, 2, v10            ; r")
    e("v_and_b32 v11, 3, v2                 ; c4")
    e("v_lshrrev_b32 v12, 4, v2")
    e("v_and_b32 v12, 1, v12                ; q1")
    e("v_lshlrev_b32 v13, 1, v12")
    e("v_lshrrev_b32 v14, 1, v11")
    e("v_add_u32 v13, v13, v14")
    e("s_lshl_b32 s36, s33, 3")
    e("v_add_u32 v13, s36, v13              ; g = wn*8 + q1*2 + (c4>>1)")
    e("v_lshlrev_b32 v14, 2, v10")
    e("v_xor_b32 v13, v13, v14")
    e("v_lshlrev_b32 v13, 4, v13")
    e("v_and_b32 v14, 1, v11")
    e("v_lshlrev_b32 v14, 3, v14")
    e("v_add_u32 v13, v13, v14")
    e("v_lshlrev_b32 v14, 3, v9")
    e("v_add_u32 v14, v14, v10")
    e("v_lshlrev_b32 v14, 8, v14")
    e("v_add_u32 v13, v13, v14")
    e(f"v_add_u32 v10, {WBASE2}, v13        ; nt=0")
    e("v_xor_b32 v11, 64, v10               ; nt=1")
    for i in range(32): e(f"v_mov_b32 v{192+i}, 0")
    e("s_waitcnt vmcnt(16)")
    for it in range(8):
        e(f"ds_write_b128 v6, v[{ZST+4*it}:{ZST+4*it+3}] offset:{it*8*XROW}")
    for u in range(16):
        e(f"s_waitcnt vmcnt({15-u})")
        e(f"ds_write_b128 v5, v[{WST+4*u}:{WST+4*u+3}] offset:{u*4096}")
    e("s_waitcnt lgkmcnt(0)")
    e("s_barrier")
    FR = [160, 172]
    def reads(ks):
        fb = FR[ks % 2]
        e(f"ds_read_b128 v[{fb}:{fb+3}], v8 offset:{ks*32}")
        for nt in range(2):
            e(f"ds_read_b64_tr_b16 v[{fb+4+4*nt}:{fb+4+4*nt+1}], v{10+nt} offset:{ks*4096}")
            e(f"ds_read_b64_tr_b16 v[{fb+4+4*nt+2}:{fb+4+4*nt+3}], v{10+nt} offset:{ks*4096+1024}")
    reads(0)
    for ks in range(16):
        if ks + 1 < 16:
            reads(ks + 1); cnt = 5
        else: cnt = 0
        e(f"s_waitcnt lgkmcnt({cnt})")
        fb = FR[ks % 2]
        for nt in range(2):
            acc = 192 + nt*16
            e(f"v_mfma_f32_32x32x16_bf16 v[{acc}:{acc+15}], v[{fb+4+4*nt}:{fb+4+4*nt+3}], v[{fb}:{fb+3}], v[{acc}:{acc+15}]")
    e("s_nop 15")
    e("s_nop 7")
    e("v_and_b32 v12, 31, v2")
    e("s_lshl_b32 s36, s24, 6")
    e("s_lshl_b32 s37, s32, 5")
    e("s_add_u32 s36, s36, s37")
    e("v_add_u32 v12, s36, v12")
    e("v_lshlrev_b32 v12, 9, v12")
    e("s_lshl_b32 s36, s27, 8")
    e("s_lshl_b32 s37, s33, 7")
    e("s_add_u32 s36, s36, s37")
    e("v_lshlrev_b32 v13, 3, v9")
    e("v_add_u32 v13, s36, v13")
    e("v_add_u32 v12, v12, v13")
    for nt in range(2):
        for q in range(4):
            f = 192 + nt*16 + 4*q
            p = 64 + nt*8 + 2*q
            e(f"v_cvt_pk_bf16_f32 v{p}, v{f}, v{f+1}")
            e(f"v_cvt_pk_bf16_f32 v{p+1}, v{f+2}, v{f+3}")
    for nt in range(2):
        for q in range(4):
            p = 64 + nt*8 + 2*q
            e(f"buffer_store_dwordx2 v[{p}:{p+1}], v12, s[20:23], 0 offen offset:{nt*64+16*q}")
    e("s_waitcnt vmcnt(0)")
    e("L2_end:")
    e("s_endpgm")


k2()

e('.section .rodata,"a"')
for name in ("wn_conv_kernel", "wn_out_kernel"):
    e(".p2align 6")
    e(f".amdhsa_kernel {name}")
    e("  .amdhsa_next_free_vgpr 256")
    e("  .amdhsa_next_free_sgpr 96")
    e("  .amdhsa_accum_offset 256")
    e("  .amdhsa_group_segment_fixed_size 0")
    e("  .amdhsa_kernarg_size 48")
    e("  .amdhsa_user_sgpr_count 2")
    e("  .amdhsa_user_sgpr_kernarg_segment_ptr 1")
    e("  .amdhsa_system_sgpr_workgroup_id_x 1")
    e(".end_amdhsa_kernel")
out = sys.argv[1] if len(sys.argv) > 1 else "standalone__autoregressive_conv_wavenet__speech.s"
open(out, "w").write("\n".join(L) + "\n")
```
